```python
import torch

def _softmax(x, axis=-1):
    return torch.softmax(x, dim=axis)
def _gelu(x):
    return torch.nn.functional.gelu(x, approximate="tanh")
def _silu(x):
    return torch.nn.functional.silu(x)
def _sigmoid(x):
    return torch.sigmoid(x)
def _layernorm(x, axis=-1, eps=1e-5):
    m = x.mean(dim=axis, keepdim=True)
    v = x.var(dim=axis, keepdim=True, unbiased=False)
    return (x - m) / torch.sqrt(v + eps)
def _scatter_add(tgt, idx, src, axis=0):
    return tgt.clone().index_add_(axis, idx, src)
def _segment_sum(src, seg, n):
    out = torch.zeros((n,) + src.shape[1:], dtype=src.dtype)
    return out.index_add_(0, seg, src)
def _pad(x, pw):
    flat = tuple(v for pair in reversed(pw) for v in pair)
    return torch.nn.functional.pad(x, flat)

kernel_name = 'gated_mix__mha_block__mixer_channel_mlp__prompt'

def setup_inputs():

    _w = (lambda a: (lambda t: t.to(torch.bfloat16) if t.is_floating_point() else t)(torch.as_tensor(a)))
    def _A_setup():
        B, S, D, H = 1, 2048, 512, 32
        return {
            "x": _w((lambda *s: torch.randn(*s, dtype=torch.bfloat16) * 0.05)(B, S, D)),
            "wqkv": _w((lambda *s: torch.randn(*s, dtype=torch.bfloat16) * 0.8)(D, 3 * D)),
            "wo": _w((lambda *s: torch.randn(*s, dtype=torch.bfloat16) * 0.1)(D, D)),
        }
    _A_in = _A_setup()

    def _B_setup():
        B, S, D, F = 1, 2048, 512, 1792
        return {
            "x": _w((lambda *s: torch.randn(*s, dtype=torch.bfloat16) * 0.05)(B, S, D)),
            "w1": _w((lambda *s: torch.randn(*s, dtype=torch.bfloat16) * 1.6)(D, F) * (D ** -0.5)),
            "b1": _w((lambda *s: torch.randn(*s, dtype=torch.bfloat16) * 0.8)(F)),
            "w2": _w((lambda *s: torch.randn(*s, dtype=torch.bfloat16) * 0.05)(F, D) * (F ** -0.5)),
            "b2": _w((lambda *s: torch.randn(*s, dtype=torch.bfloat16) * 0.05)(D)),
        }
    _B_in = _B_setup()

    return {
        "A_x": _A_in["x"],
        "A_wqkv": _A_in["wqkv"],
        "A_wo": _A_in["wo"],
        "B_x": _B_in["x"],
        "B_w1": _B_in["w1"],
        "B_b1": _B_in["b1"],
        "B_w2": _B_in["w2"],
        "B_b2": _B_in["b2"],
        "gate_w": _w((lambda *s: torch.randn(*s, dtype=torch.bfloat16) * 0.05)(512) * 16.0),
    }

def reference(A_x, A_wqkv, A_wo, B_x, B_w1, B_b1, B_w2, B_b2, gate_w):
    def _A_ref(x, wqkv, wo):
        B, S, D = x.shape
        H = 32
        Dh = D // H
        qkv = (lambda x, *d: x.permute(*d))((x @ wqkv).reshape(B, S, 3, H, Dh), 2, 0, 3, 1, 4)
        q, k, v = qkv[0], qkv[1], qkv[2]
        scores = torch.einsum("bhqd,bhkd->bhqk", q, k) * (Dh ** -0.5)
        p = _softmax(scores, axis=-1)
        o = torch.einsum("bhqk,bhkd->bhqd", p, v)
        return (lambda x, *d: x.permute(*d))(o, 0, 2, 1, 3).reshape(B, S, D) @ wo

    def _B_ref(x, w1, b1, w2, b2):
        y = _layernorm(x, axis=-1)
        h = _gelu(torch.einsum("bsd,df->bsf", y, w1) + b1)
        return torch.einsum("bsf,fd->bsd", h, w2) + b2

    x = A_x
    g = _sigmoid((x * gate_w).sum(-1, keepdims=True))
    a = _A_ref(x, A_wqkv, A_wo)
    b = _B_ref(x, B_w1, B_b1, B_w2, B_b2)
    return g * a + (1 - g) * b
```

```python
import sys, math

class A:
    def __init__(self):
        self.l = []
    def __call__(self, s):
        for x in s.strip("\n").split("\n"):
            x = x.strip()
            if not x:
                continue
            self.l.append(x if x.endswith(":") else "  " + x)
    def raw(self, s):
        self.l.append(s)
    def text(self):
        return "\n".join(self.l) + "\n"

def vr(a, n):
    return f"v[{a}:{a+n-1}]" if n > 1 else f"v{a}"
def sr(a, n):
    return f"s[{a}:{a+n-1}]" if n > 1 else f"s{a}"

KA_X, KA_WQKV, KA_WO, KA_BX, KA_W1, KA_B1, KA_W2, KA_B2, KA_GATE, KA_OUT, KA_DBG, KA_WS = [8 * i for i in range(12)]
MB = 1 << 20
WS_Q = 0
WS_KV = 2 * MB
WS_O = 6 * MB
WS_Y = 8 * MB
WS_H = 10 * MB
WS_G = 17 * MB
WS_SIZE = 24 * MB
LOG2E = 1.4426950408889634
def f2u(x):
    import struct
    return struct.unpack("<I", struct.pack("<f", x))[0]

def srd(a, d, p, size):
    a(f"s_mov_b32 s{d}, s{p}\ns_mov_b32 s{d+1}, s{p+1}\ns_mov_b32 s{d+2}, {size:#x}\ns_mov_b32 s{d+3}, 0x20000")

def kernel_head(a, name):
    a.raw(f".globl {name}\n.p2align 8\n.type {name},@function\n{name}:")

def descriptor(name, nv, ns=96):
    nv = (nv + 7) // 8 * 8
    return f""".amdhsa_kernel {name}
  .amdhsa_next_free_vgpr {nv}
  .amdhsa_next_free_sgpr {ns}
  .amdhsa_accum_offset {nv}
  .amdhsa_group_segment_fixed_size 0
  .amdhsa_kernarg_size 96
  .amdhsa_user_sgpr_count 2
  .amdhsa_user_sgpr_kernarg_segment_ptr 1
  .amdhsa_system_sgpr_workgroup_id_x 1
  .amdhsa_float_denorm_mode_32 3
.end_amdhsa_kernel
"""

def wave_sum(a, regs, tmp):
    def pad():
        if len(regs) < 3:
            a(f"s_nop {2 - len(regs)}")
    a("s_nop 1")
    for ctl in ("quad_perm:[1,0,3,2]", "quad_perm:[2,3,0,1]", "row_half_mirror", "row_mirror"):
        for r in regs:
            a(f"v_add_f32_dpp v{r}, v{r}, v{r} {ctl} row_mask:0xf bank_mask:0xf")
        pad()
    for op in ("v_permlane16_swap_b32", "v_permlane32_swap_b32"):
        for r, t in zip(regs, tmp):
            a(f"v_mov_b32 v{t}, v{r}")
        a("s_nop 1")
        for r, t in zip(regs, tmp):
            a(f"{op} v{r}, v{t}")
        a("s_nop 1")
        for r, t in zip(regs, tmp):
            a(f"v_add_f32 v{r}, v{r}, v{t}")

def tr_lane_addr(a, dst, t0, t1, pitch):
    a(f"""v_lshrrev_b32 v{t0}, 5, v0
    v_lshlrev_b32 v{t0}, 3, v{t0}
    v_bfe_u32 v{t1}, v0, 2, 2
    v_add_u32 v{t0}, v{t0}, v{t1}
    v_mul_u32_u24 v{dst}, {pitch}, v{t0}
    v_bfe_u32 v{t0}, v0, 4, 1
    v_lshl_add_u32 v{dst}, v{t0}, 5, v{dst}
    v_and_b32 v{t0}, 1, v0
    v_lshl_add_u32 v{dst}, v{t0}, 4, v{dst}
    v_bfe_u32 v{t0}, v0, 1, 1
    v_lshl_add_u32 v{dst}, v{t0}, 3, v{dst}""")

K1_STAGE = 28672
K1_LDS = 4 * K1_STAGE
def k1(a):
    name = "qkv_kernel"
    kernel_head(a, name)
    a(f"""s_cmp_ge_u32 s2, 256
    s_cbranch_scc1 k1_end
    s_load_dwordx4 s[4:7], s[0:1], {KA_X}
    s_load_dwordx2 s[8:9], s[0:1], {KA_GATE}
    s_load_dwordx2 s[10:11], s[0:1], {KA_WS}
    v_lshrrev_b32 v1, 6, v0
    v_and_b32 v0, 63, v0
    v_readfirstlane_b32 s3, v1
    s_and_b32 s30, s2, 7
    s_lshr_b32 s31, s2, 3
    s_and_b32 s28, s30, 3
    s_lshl_b32 s28, s28, 2
    s_and_b32 s32, s31, 3
    s_add_u32 s28, s28, s32
    s_lshr_b32 s29, s30, 2
    s_lshl_b32 s29, s29, 3
    s_lshr_b32 s32, s31, 2
    s_add_u32 s29, s29, s32
    s_cmp_ge_u32 s3, 4
    s_cbranch_scc1 k1_loader""")
    XA = [2, 3, 4, 5]; XB = [6, 7, 8, 9]; WA = 10; WB = 11; T0 = 12; T1 = 13; T2 = 14
    F = [16, 32]
    ACC = [48, 64, 80]
    a(f"""v_and_b32 v{T0}, 31, v0
    s_lshl_b32 s32, s3, 12
    v_lshlrev_b32 v{T1}, 7, v{T0}
    v_add_u32 v{T1}, s32, v{T1}
    v_bfe_u32 v{T0}, v0, 1, 3
    v_lshrrev_b32 v{T2}, 5, v0
    v_xor_b32 v{T0}, v{T0}, v{T2}""")
    for j in range(4):
        a(f"v_xor_b32 v{T2}, {2*j}, v{T0}\nv_lshl_add_u32 v{XA[j]}, v{T2}, 4, v{T1}\nv_add_u32 v{XB[j]}, {2*K1_STAGE}, v{XA[j]}")
    tr_lane_addr(a, WA, T0, T1, 64)
    a(f"v_add_u32 v{WA}, 16384, v{WA}\nv_add_u32 v{WB}, {2*K1_STAGE}, v{WA}")
    a("s_waitcnt lgkmcnt(0)")
    srd(a, 20, 10, WS_SIZE)
    def reads(step):
        s, j = divmod(step, 4)
        slot = s % 4
        xa = (XA if slot < 2 else XB)[j]; wa = WA if slot < 2 else WB
        so = (slot & 1) * K1_STAGE
        f = F[step & 1]
        a(f"ds_read_b128 {vr(f,4)}, v{xa} offset:{so}")
        for seg in range(3):
            o = so + (j * 3 + seg) * 1024
            a(f"ds_read_b64_tr_b16 {vr(f+4+4*seg,2)}, v{wa} offset:{o}")
            a(f"ds_read_b64_tr_b16 {vr(f+6+4*seg,2)}, v{wa} offset:{o+256}")
    a("s_barrier")
    reads(0)
    for step in range(32):
        f = F[step & 1]
        last_of_stage = (step & 3) == 3
        if step == 31:
            a("s_waitcnt lgkmcnt(0)")
        elif last_of_stage:
            a("s_waitcnt lgkmcnt(0)\ns_barrier")
            reads(step + 1)
        else:
            reads(step + 1)
            a("s_waitcnt lgkmcnt(7)")
        c = (lambda i: "0") if step == 0 else (lambda i: vr(ACC[i], 16))
        a(f"v_mfma_f32_32x32x16_bf16 {vr(ACC[0],16)}, {vr(f+4,4)}, {vr(f,4)}, {c(0)}")
        a(f"v_mfma_f32_32x32x16_bf16 {vr(ACC[1],16)}, {vr(f+8,4)}, {vr(f,4)}, {c(1)}")
        a(f"v_mfma_f32_32x32x16_bf16 {vr(ACC[2],16)}, {vr(f,4)}, {vr(f+12,4)}, {c(2)}")
    a(f"""s_lshl_b32 s32, s28, 2
    s_add_u32 s32, s32, s3
    s_lshl_b32 s33, s32, 10
    s_lshl_b32 s34, s29, 17
    s_add_u32 s35, s33, s34
    s_add_u32 s35, s35, {WS_Q}
    s_add_u32 s36, s35, 0x10000
    s_lshl_b32 s34, s29, 18
    s_add_u32 s37, s33, s34
    s_add_u32 s37, s37, {WS_KV}
    s_add_u32 s38, s37, 0x20000
    s_add_u32 s39, s37, 0x10000
    v_lshlrev_b32 v{XA[0]}, 4, v0
    v_and_b32 v{T0}, 0x33, v0
    v_bfe_u32 v{T1}, v0, 2, 1
    v_lshl_or_b32 v{T0}, v{T1}, 3, v{T0}
    v_bfe_u32 v{T1}, v0, 3, 1
    v_lshl_or_b32 v{T0}, v{T1}, 2, v{T0}
    v_lshlrev_b32 v{XA[1]}, 4, v{T0}
    v_and_b32 v{T0}, 15, v0
    v_lshlrev_b32 v{T0}, 4, v{T0}
    v_lshrrev_b32 v{T1}, 5, v0
    v_lshl_add_u32 v{T0}, v{T1}, 8, v{T0}
    v_bfe_u32 v{T1}, v0, 4, 1
    v_lshl_add_u32 v{XA[2]}, v{T1}, 17, v{T0}
    s_mov_b32 s40, {f2u(0.25*LOG2E):#x}""")
    for hb in range(2):
        for j in range(8):
            a(f"v_mul_f32 v{ACC[0]+8*hb+j}, s40, v{ACC[0]+8*hb+j}")
        for j in range(4):
            a(f"v_cvt_pk_bf16_f32 v{F[0]+4*hb+j}, v{ACC[0]+8*hb+2*j}, v{ACC[0]+8*hb+2*j+1}")
        a(f"buffer_store_dwordx4 {vr(F[0]+4*hb,4)}, v{XA[0]}, s[20:23], s{35+hb} offen")
    for hb in range(2):
        for j in range(4):
            a(f"v_cvt_pk_bf16_f32 v{F[0]+8+4*hb+j}, v{ACC[1]+8*hb+2*j}, v{ACC[1]+8*hb+2*j+1}")
        a(f"buffer_store_dwordx4 {vr(F[0]+8+4*hb,4)}, v{XA[1]}, s[20:23], s{37+hb} offen")
    for st in range(2):
        for j in range(4):
            a(f"v_cvt_pk_bf16_f32 v{F[1]+4*st+j}, v{ACC[2]+8*st+2*j}, v{ACC[2]+8*st+2*j+1}")
        a(f"buffer_store_dwordx4 {vr(F[1]+4*st,4)}, v{XA[2]}, s[20:23], s39 offen offset:{512*st}")
    a("s_endpgm")
    a("k1_loader:")
    VX = 2; VW = 3; VL = 4; T0 = 5; T1 = 6
    a(f"""s_sub_u32 s3, s3, 4
    s_and_b32 s32, s3, 1
    s_lshl_b32 s32, s32, 2
    v_lshrrev_b32 v{T0}, 4, v0
    v_or_b32 v{T0}, s32, v{T0}
    v_and_b32 v{T1}, 7, v0
    v_xor_b32 v{T0}, v{T0}, v{T1}
    v_lshlrev_b32 v{T0}, 4, v{T0}
    v_lshrrev_b32 v{T1}, 3, v0
    v_lshl_add_u32 v{VX}, v{T1}, 10, v{T0}
    v_lshrrev_b32 v{T0}, 2, v0
    v_mul_u32_u24 v{VW}, 3072, v{T0}
    v_and_b32 v{T0}, 3, v0
    v_lshl_add_u32 v{VW}, v{T0}, 4, v{VW}
    v_lshlrev_b32 v{VL}, 4, v0
    s_lshl_b32 s33, s28, 17
    s_lshl_b32 s34, s3, 13
    s_add_u32 s33, s33, s34
    s_mul_i32 s34, s3, {16*3072}
    s_lshl_b32 s35, s29, 6
    s_add_u32 s34, s34, s35
    s_lshl_b32 s35, s3, 10
    s_mul_i32 s36, s3, 3072
    s_add_u32 s36, s36, 16384
    s_waitcnt lgkmcnt(0)""")
    srd(a, 12, 4, 2 * MB)
    srd(a, 16, 6, 512 * 3072)
    srd(a, 20, 10, WS_SIZE)
    srd(a, 24, 8, 1024)
    def issue(s):
        so = (s % 4) * K1_STAGE
        for q in range(4):
            a(f"s_add_u32 m0, s35, {so + q*4096}\ns_add_u32 s37, s33, {q*32768 + s*128}")
            a(f"buffer_load_dwordx4 v{VX}, s[12:15], s37 offen lds")
        a(f"s_add_u32 m0, s36, {so}\ns_add_u32 s37, s34, {s*64*3072}")
        for seg in range(3):
            a(f"buffer_load_dwordx4 v{VW}, s[16:19], s37 offen offset:{seg*1024} lds")
    R0 = 8; R1 = 12; GW = 16
    for s in range(3):
        issue(s)
    for s in range(8):
        later = min(7, s + 2) - s
        extra = 3 if s >= 5 else 0
        a(f"s_waitcnt vmcnt({7*later + extra})\ns_barrier")
        if s + 3 < 8:
            issue(s + 3)
        if s == 4:
            a(f"""s_lshl_b32 s38, s2, 3
            s_lshl_b32 s39, s3, 1
            s_add_u32 s38, s38, s39
            s_lshl_b32 s39, s38, 10
            buffer_load_dwordx4 {vr(R0,4)}, v{VL}, s[12:15], s39 offen
            buffer_load_dwordx4 {vr(R1,4)}, v{VL}, s[12:15], s39 offen offset:1024
            buffer_load_dwordx4 {vr(GW,4)}, v{VL}, s[24:27], 0 offen""")
    X0 = 24; X1 = 32; G = 40; SM = [48, 49, 50, 51]; TM = [52, 53, 54, 55]
    a("s_waitcnt vmcnt(0)")
    for (src, dst) in ((R0, X0), (R1, X1), (GW, G)):
        for j in range(4):
            a(f"v_lshlrev_b32 v{dst+2*j}, 16, v{src+j}\nv_and_b32 v{dst+2*j+1}, 0xffff0000, v{src+j}")
    for r, X in enumerate((X0, X1)):
        a(f"v_add_f32 v{SM[r]}, v{X}, v{X+1}\nv_mul_f32 v{SM[2+r]}, v{X}, v{G}")
        a(f"v_fmac_f32 v{SM[2+r]}, v{X+1}, v{G+1}")
        for j in range(2, 8):
            a(f"v_add_f32 v{SM[r]}, v{SM[r]}, v{X+j}\nv_fmac_f32 v{SM[2+r]}, v{X+j}, v{G+j}")
    wave_sum(a, SM, TM)
    a(f"s_mov_b32 s40, {f2u(-1.0/512):#x}\ns_mov_b32 s41, {f2u(-LOG2E):#x}")
    for r, X in enumerate((X0, X1)):
        for j in range(8):
            a(f"v_fma_f32 v{X+j}, v{SM[r]}, s40, v{X+j}")
        a(f"v_mul_f32 v{SM[r]}, v{X}, v{X}")
        for j in range(1, 8):
            a(f"v_fmac_f32 v{SM[r]}, v{X+j}, v{X+j}")
    a(f"""v_cmp_eq_u32 vcc, 1, v0
    s_nop 1
    v_cndmask_b32 v{G}, v{SM[2]}, v{SM[3]}, vcc
    v_mul_f32 v{G}, s41, v{G}
    v_exp_f32 v{G}, v{G}
    s_lshl_b32 s39, s38, 2
    v_add_f32 v{G}, 1.0, v{G}
    v_rcp_f32 v{G}, v{G}
    v_lshlrev_b32 v{G+1}, 2, v0
    v_cmp_gt_u32 vcc, 2, v0
    v_mov_b32 v{G+2}, 0x7ffffff0
    s_add_u32 s39, s39, {WS_G}
    v_cndmask_b32 v{G+1}, v{G+2}, v{G+1}, vcc
    buffer_store_dword v{G}, v{G+1}, s[20:23], s39 offen""")
    wave_sum(a, SM[:2], TM[:2])
    a(f"s_mov_b32 s40, {f2u(1.0/512):#x}\nv_mov_b32 v{G+3}, {f2u(1e-5):#x}")
    for r in range(2):
        a(f"v_fma_f32 v{SM[r]}, v{SM[r]}, s40, v{G+3}")
    for r in range(2):
        a(f"v_rsq_f32 v{SM[r]}, v{SM[r]}")
    a(f"""v_lshrrev_b32 v{T0}, 1, v0
    v_lshlrev_b32 v{T0}, 10, v{T0}
    v_and_b32 v{T1}, 1, v0
    v_lshl_add_u32 v{T0}, v{T1}, 9, v{T0}
    s_lshr_b32 s39, s38, 5
    s_lshl_b32 s39, s39, 15
    s_and_b32 s40, s38, 31
    s_lshl_b32 s40, s40, 4
    s_add_u32 s39, s39, s40
    s_add_u32 s39, s39, {WS_Y}""")
    for r, (X, R) in enumerate(((X0, R0), (X1, R1))):
        for j in range(8):
            a(f"v_mul_f32 v{X+j}, v{X+j}, v{SM[r]}")
        for j in range(4):
            a(f"v_cvt_pk_bf16_f32 v{R+j}, v{X+2*j}, v{X+2*j+1}")
        a(f"buffer_store_dwordx4 {vr(R,4)}, v{T0}, s[20:23], s39 offen offset:{16*r}")
    a("k1_end:\ns_endpgm")
    return name, 96

class GemmP:
    D = 4
    def __init__(self, a, base, lds_base_sgpr):
        self.a = a
        self.VD = base
        self.VT0 = base + 1
        self.VT1 = base + 2
        self.VL = base + 3
        self.W = [base + 4, base + 12]
        self.Y = [base + 20 + 8 * i for i in range(self.D)]
        self.ACC = [base + 52 + 16 * i for i in range(4)]
        self.end = base + 116
        self.sl = lds_base_sgpr
    def setup(self, pitch, t0, t1):
        a = self.a
        a(f"""v_lshrrev_b32 v{t0}, 3, v0
        v_mul_u32_u24 v{self.VD}, {pitch}, v{t0}
        v_bfe_u32 v{t0}, v0, 4, 1
        v_lshlrev_b32 v{t0}, 2, v{t0}
        v_and_b32 v{t1}, 7, v0
        v_xor_b32 v{t0}, v{t0}, v{t1}
        v_lshl_add_u32 v{self.VD}, v{t0}, 4, v{self.VD}""")
        tr_lane_addr(a, self.VT0, t0, t1, 128)
        a(f"""v_bfe_u32 v{t0}, v0, 3, 1
        v_lshl_add_u32 v{self.VT0}, v{t0}, 6, v{self.VT0}
        v_add_u32 v{self.VT0}, s{self.sl}, v{self.VT0}
        v_xor_b32 v{self.VT1}, 64, v{self.VT0}
        v_lshlrev_b32 v{self.VL}, 4, v0""")
    def issue(self, slot, srdW, sW, pitch, srdY, sY, ystride):
        a = self.a
        a(f"s_add_u32 m0, s{self.sl}, {slot*2048}\ns_add_u32 s{self.st}, s{sW}, {8*pitch}")
        a(f"buffer_load_dwordx4 v{self.VD}, {sr(srdW,4)}, s{sW} offen lds")
        a(f"s_add_u32 m0, s{self.sl}, {slot*2048+1024}\ns_add_u32 s{sW}, s{sW}, {16*pitch}")
        a(f"buffer_load_dwordx4 v{self.VD}, {sr(srdW,4)}, s{self.st} offen lds")
        a(f"s_add_u32 s{self.st}, s{sY}, {ystride}")
        a(f"buffer_load_dwordx4 {vr(self.Y[slot],4)}, v{self.VL}, {sr(srdY,4)}, s{sY} offen")
        a(f"buffer_load_dwordx4 {vr(self.Y[slot]+4,4)}, v{self.VL}, {sr(srdY,4)}, s{self.st} offen")
        a(f"s_add_u32 s{sY}, s{sY}, 1024")
    def trreads(self, slot, wb):
        a = self.a
        w = self.W[wb]
        for ct, vt in enumerate((self.VT0, self.VT1)):
            a(f"ds_read_b64_tr_b16 {vr(w+4*ct,2)}, v{vt} offset:{slot*2048}")
            a(f"ds_read_b64_tr_b16 {vr(w+4*ct+2,2)}, v{vt} offset:{slot*2048+512}")
    def mfmas(self, slot, wb, cinit=None):
        a = self.a
        w = self.W[wb]; y = self.Y[slot]
        for ct in range(2):
            for tt in range(2):
                acc = self.ACC[ct * 2 + tt]
                c = vr(acc, 16) if cinit is None else cinit[ct]
                a(f"v_mfma_f32_32x32x16_bf16 {vr(acc,16)}, {vr(w+4*ct,4)}, {vr(y+4*tt,4)}, {c}")
    def step(self, u, vm, issue=None, cinit=None, tr_next=True):
        a = self.a
        if tr_next:
            a(f"s_waitcnt vmcnt({vm}) lgkmcnt(0)")
            self.trreads((u + 1) % self.D, (u + 1) & 1)
        else:
            a(f"s_waitcnt vmcnt({vm}) lgkmcnt(0)")
        self.mfmas(u, u & 1, cinit)
        if issue:
            issue(u)

def gelu_pack(a, acc, n, dst, T, CAB):
    for i in range(0, n, 4):
        p = [acc + i, acc + i + 2]
        t = [T, T + 2]; e = [T + 4, T + 6]
        for k in range(2):
            a(f"v_pk_mul_f32 {vr(t[k],2)}, {vr(p[k],2)}, {vr(p[k],2)}")
        for k in range(2):
            a(f"v_pk_fma_f32 {vr(t[k],2)}, {vr(t[k],2)}, {vr(CAB,2)}, {vr(CAB,2)} op_sel:[0,1,0] op_sel_hi:[1,1,0]")
        for k in range(2):
            a(f"v_pk_mul_f32 {vr(t[k],2)}, {vr(t[k],2)}, {vr(p[k],2)}")
        for k in range(2):
            a(f"v_exp_f32 v{e[k]}, v{t[k]}\nv_exp_f32 v{e[k]+1}, v{t[k]+1}")
        for k in range(2):
            a(f"v_pk_add_f32 {vr(e[k],2)}, {vr(e[k],2)}, 1.0 op_sel_hi:[1,0]")
        for k in range(2):
            a(f"v_rcp_f32 v{e[k]}, v{e[k]}\nv_rcp_f32 v{e[k]+1}, v{e[k]+1}")
        for k in range(2):
            a(f"v_pk_mul_f32 {vr(e[k],2)}, {vr(e[k],2)}, {vr(p[k],2)}")
        for k in range(2):
            a(f"v_cvt_pk_bf16_f32 v{dst+i//2+k}, v{e[k]}, v{e[k]+1}")

def mlp1_body(a, pfx, sTP, sFP, sL, base):
    g = GemmP(a, base, sL); g.st = 56
    T0 = g.end; T1 = g.end + 1
    B = g.end + 2 + (g.end & 1)
    a(f"s_load_dwordx4 s[40:43], s[0:1], {KA_W1}\ns_load_dwordx2 s[44:45], s[0:1], {KA_WS}")
    g.setup(3584, T0, T1)
    a(f"v_lshrrev_b32 v{T0}, 5, v0\nv_lshlrev_b32 v{T0}, 4, v{T0}")
    a("s_waitcnt lgkmcnt(0)")
    srd(a, 48, 42, 3584)
    srd(a, 52, 40, 512 * 3584)
    srd(a, 40, 44, WS_SIZE)
    a(f"s_lshl_b32 s57, s{sFP}, 7")
    a(f"s_lshl_b32 s58, s{sTP}, 16\ns_add_u32 s58, s58, {WS_Y}")
    RB = g.W[0]
    for ct in range(2):
        for hb in range(2):
            a(f"buffer_load_dwordx4 {vr(RB+8*ct+4*hb,4)}, v{T0}, s[48:51], s57 offen offset:{64*ct+32*hb}")
    iss = lambda u: g.issue(u, 52, 57, 3584, 40, 58, 32768)
    for u in range(4):
        iss(u)
    a("s_waitcnt vmcnt(16)")
    for i in range(16):
        a(f"v_lshlrev_b32 v{B+2*i}, 16, v{RB+i}\nv_and_b32 v{B+2*i+1}, 0xffff0000, v{RB+i}")
    a("s_waitcnt vmcnt(14)")
    g.trreads(0, 0)
    for u in range(4):
        g.step(u, 10, iss, cinit=[vr(B, 16), vr(B + 16, 16)] if u == 0 else None)
    a(f"s_mov_b32 s59, 6\n{pfx}_loop:")
    for u in range(4):
        g.step(u, 10, iss)
    a(f"s_sub_u32 s59, s59, 1\ns_cmp_lg_u32 s59, 0\ns_cbranch_scc1 {pfx}_loop")
    g.step(0, 10); g.step(1, 6); g.step(2, 2); g.step(3, 0, tr_next=False)
    CAB = B; T = B + 2; P = B + 10
    ca = -2.0 * math.sqrt(2.0 / math.pi) * LOG2E
    a(f"v_mov_b32 v{CAB}, {f2u(ca):#x}\nv_mov_b32 v{CAB+1}, {f2u(ca*0.044715):#x}")
    a(f"s_mul_i32 s57, s{sTP}, {2*112*1024}\ns_lshl_b32 s58, s{sFP}, 12\ns_add_u32 s57, s57, s58\ns_add_u32 s57, s57, {WS_H}\ns_add_u32 s58, s57, {112*1024}")
    a("s_nop 5")
    for ct in range(2):
        for tt in range(2):
            p = P + 8 * ((ct * 2 + tt) & 1)
            gelu_pack(a, g.ACC[ct * 2 + tt], 16, p, T, CAB)
            for hb in range(2):
                a(f"buffer_store_dwordx4 {vr(p+4*hb,4)}, v{g.VL}, s[40:43], s{57+tt} offen offset:{2048*ct+1024*hb}")
    return max(B + 32, P + 16)

def kmlp1(a):
    name = "mlp1_kernel"
    kernel_head(a, name)
    a("""s_cmp_ge_u32 s2, 224
    s_cbranch_scc1 m1_end
    v_lshrrev_b32 v1, 6, v0
    v_and_b32 v0, 63, v0
    v_readfirstlane_b32 s3, v1
    s_and_b32 s30, s2, 7
    s_lshr_b32 s31, s2, 3
    s_and_b32 s4, s30, 3
    s_lshl_b32 s4, s4, 3
    s_and_b32 s32, s31, 3
    s_lshl_b32 s32, s32, 1
    s_add_u32 s4, s4, s32
    s_and_b32 s32, s3, 1
    s_add_u32 s4, s4, s32
    s_lshr_b32 s5, s30, 2
    s_mul_i32 s5, s5, 14
    s_lshr_b32 s32, s31, 2
    s_lshl_b32 s32, s32, 1
    s_add_u32 s5, s5, s32
    s_lshr_b32 s32, s3, 1
    s_add_u32 s5, s5, s32
    s_lshl_b32 s6, s3, 13""")
    nv = mlp1_body(a, "m1", 4, 5, 6, 2)
    a("m1_end:\ns_endpgm")
    return name, nv

def k3(a):
    name = "out_kernel"
    kernel_head(a, name)
    a(f"""s_cmp_ge_u32 s2, 256
    s_cbranch_scc1 k3_end
    s_load_dwordx2 s[40:41], s[0:1], {KA_WO}
    s_load_dwordx4 s[44:47], s[0:1], {KA_W2}
    s_load_dwordx2 s[42:43], s[0:1], {KA_OUT}
    s_load_dwordx2 s[60:61], s[0:1], {KA_WS}
    v_lshrrev_b32 v1, 6, v0
    v_and_b32 v0, 63, v0
    v_readfirstlane_b32 s3, v1
    s_and_b32 s30, s2, 7
    s_lshr_b32 s31, s2, 3
    s_and_b32 s4, s30, 3
    s_lshl_b32 s4, s4, 3
    s_and_b32 s32, s31, 7
    s_add_u32 s4, s4, s32
    s_lshr_b32 s5, s30, 2
    s_lshl_b32 s5, s5, 2
    s_lshr_b32 s32, s31, 3
    s_add_u32 s5, s5, s32
    s_lshl_b32 s6, s3, 13""")
    g = GemmP(a, 2, 6); g.st = 56
    T0 = g.end; T1 = g.end + 1; G = g.end + 2; RB = g.end + 4
    g.setup(1024, T0, T1)
    a("s_waitcnt lgkmcnt(0)")
    srd(a, 8, 44, 1792 * 1024)
    srd(a, 12, 40, 512 * 1024)
    srd(a, 16, 60, WS_SIZE)
    srd(a, 20, 42, 2 * MB)
    srd(a, 24, 46, 1024)
    a(f"""s_lshl_b32 s33, s5, 7
    s_mul_i32 s57, s3, {448*1024}
    s_add_u32 s57, s57, s33
    s_mul_i32 s58, s4, {224*1024}
    s_mul_i32 s34, s3, {28*1024}
    s_add_u32 s58, s58, s34
    s_add_u32 s58, s58, {WS_H}
    s_lshl_b32 s62, s3, 17
    s_add_u32 s62, s62, s33
    s_lshl_b32 s63, s4, 16
    s_lshl_b32 s34, s3, 13
    s_add_u32 s63, s63, s34
    s_add_u32 s63, s63, {WS_O}""")
    a(f"""v_and_b32 v{T0}, 31, v0
    v_lshlrev_b32 v{T0}, 2, v{T0}
    s_lshl_b32 s34, s4, 8
    s_add_u32 s34, s34, {WS_G}
    buffer_load_dword v{G}, v{T0}, s[16:19], s34 offen
    buffer_load_dword v{G+1}, v{T0}, s[16:19], s34 offen offset:128
    v_lshrrev_b32 v{T1}, 5, v0
    v_lshlrev_b32 v{T1}, 4, v{T1}
    s_lshr_b32 s34, s3, 1
    s_lshl_b32 s34, s34, 6
    s_add_u32 s34, s34, s33
    buffer_load_dwordx4 {vr(RB,4)}, v{T1}, s[24:27], s34 offen
    buffer_load_dwordx4 {vr(RB+4,4)}, v{T1}, s[24:27], s34 offen offset:32""")
    issb = lambda u: g.issue(u, 8, 57, 1024, 16, 58, 112 * 1024)
    issa = lambda u: g.issue(u, 12, 62, 1024, 16, 63, 32 * 1024)
    for u in range(4):
        issb(u)
    a("s_waitcnt vmcnt(14)")
    g.trreads(0, 0)
    for u in range(4):
        g.step(u, 10, issb, cinit=["0", "0"] if u == 0 else None)
    a(f"s_mov_b32 s59, 5\nk3_loop:")
    for u in range(4):
        g.step(u, 10, issb)
    a(f"s_sub_u32 s59, s59, 1\ns_cmp_lg_u32 s59, 0\ns_cbranch_scc1 k3_loop")
    for u in range(4):
        g.step(u, 10, issa)
    a(f"v_sub_f32 v{G}, 1.0, v{G}\nv_sub_f32 v{G+1}, 1.0, v{G+1}\ns_nop 7\ns_nop 1")
    for i in range(4):
        for j in range(0, 16, 2):
            sel = "op_sel:[0,1] op_sel_hi:[1,1]" if (i & 1) else "op_sel_hi:[1,0]"
            a(f"v_pk_mul_f32 {vr(g.ACC[i]+j,2)}, {vr(g.ACC[i]+j,2)}, {vr(G,2)} {sel}")
    for u in range(4):
        g.step(u, 10, issa)
    g.step(0, 10); g.step(1, 6); g.step(2, 2); g.step(3, 0, tr_next=False)
    a("s_barrier")
    a(f"s_nop 7\ns_nop 1")
    for d in range(4):
        a(f"""s_cmp_eq_u32 s3, {d}
        s_cbranch_scc1 k3_skip{d}
        s_sub_u32 s34, s3, {d+1}
        s_and_b32 s34, s34, 3
        s_lshl_b32 s34, s34, 12
        s_add_u32 s34, s34, {d*12288}
        v_add_u32 v{T0}, s34, v{g.VL}""")
        for q in range(4):
            a(f"ds_write_b128 v{T0}, {vr(g.ACC[d]+4*q,4)} offset:{1024*q}")
        a(f"k3_skip{d}:")
    a("s_waitcnt lgkmcnt(0)")
    for d in range(1, 4):
        a(f"s_cmp_lg_u32 s3, {d}\ns_cbranch_scc1 k3_nm{d}")
        for j in range(16):
            a(f"v_mov_b32 v{g.ACC[0]+j}, v{g.ACC[d]+j}")
        a(f"k3_nm{d}:")
    a(f"""s_and_b32 s34, s3, 1
    s_cmp_eq_u32 s34, 0
    s_cselect_b64 vcc, -1, 0
    s_mul_i32 s34, s3, 12288
    v_cndmask_b32 v{G}, v{G+1}, v{G}, vcc
    v_add_u32 v{T0}, s34, v{g.VL}
    s_waitcnt lgkmcnt(0)
    s_barrier""")
    R = g.ACC[1]
    for sl in range(3):
        for q in range(4):
            a(f"ds_read_b128 {vr(R+16*sl+4*q,4)}, v{T0} offset:{4096*sl+1024*q}")
    for i in range(8):
        a(f"v_lshlrev_b32 v{T1}, 16, v{RB+i}\nv_fmac_f32 v{g.ACC[0]+2*i}, v{T1}, v{G}")
        a(f"v_and_b32 v{T1}, 0xffff0000, v{RB+i}\nv_fmac_f32 v{g.ACC[0]+2*i+1}, v{T1}, v{G}")
    for sl in range(3):
        a(f"s_waitcnt lgkmcnt({8-4*sl})")
        for j in range(0, 16, 2):
            a(f"v_pk_add_f32 {vr(g.ACC[0]+j,2)}, {vr(g.ACC[0]+j,2)}, {vr(R+16*sl+j,2)}")
    for j in range(8):
        a(f"v_cvt_pk_bf16_f32 v{R+j}, v{g.ACC[0]+2*j}, v{g.ACC[0]+2*j+1}")
    a(f"""v_and_b32 v{T0}, 31, v0
    v_lshlrev_b32 v{T0}, 10, v{T0}
    v_lshrrev_b32 v{T1}, 5, v0
    v_lshl_add_u32 v{T0}, v{T1}, 4, v{T0}
    s_lshl_b32 s34, s4, 16
    s_and_b32 s35, s3, 1
    s_lshl_b32 s35, s35, 15
    s_add_u32 s34, s34, s35
    s_add_u32 s34, s34, s33
    s_lshr_b32 s35, s3, 1
    s_lshl_b32 s35, s35, 6
    s_add_u32 s34, s34, s35
    buffer_store_dwordx4 {vr(R,4)}, v{T0}, s[20:23], s34 offen
    buffer_store_dwordx4 {vr(R+4,4)}, v{T0}, s[20:23], s34 offen offset:32""")
    a("k3_end:\ns_endpgm")
    return name, RB + 8

ATT_LDS = 132 * 1024
def attn_body(a, NT, NW, pfx="at"):
    assert NT * NW == 8
    vLANE16 = 1; vKA = 2; vVA = 3; vVI = 4; vIDX = 5; vT0 = 6; vT1 = 7
    base = 8
    G = base; base += 2
    Q = [base + 4 * i for i in range(NT)]; base += 4 * NT
    K = base; base += 4
    V0 = base; base += 4
    V1 = base; base += 4
    C = [base + 16 * i for i in range(NT)]; base += 16 * NT
    O = [base + 16 * i for i in range(NT)]; base += 16 * NT
    S = [[base + 32 * i, base + 32 * i + 16] for i in range(NT)]; base += 32 * NT
    nv = base
    a(f"s_load_dwordx2 s[4:5], s[0:1], {KA_WS}")
    a(f"v_lshrrev_b32 v{vT0}, 6, v0\nv_and_b32 v0, 63, v0\nv_readfirstlane_b32 s3, v{vT0}\nv_lshlrev_b32 v{vLANE16}, 4, v0")
    a("s_and_b32 s6, s2, 7\ns_lshl_b32 s6, s6, 2\ns_bfe_u32 s7, s2, 0x20003\ns_add_u32 s6, s6, s7\ns_lshr_b32 s7, s2, 5")
    a("s_waitcnt lgkmcnt(0)")
    a(f"s_lshl_b32 s12, s6, 17\ns_add_u32 s12, s12, {WS_KV}\ns_add_u32 s8, s4, s12\ns_addc_u32 s9, s5, 0\ns_mov_b32 s10, 0x20000\ns_mov_b32 s11, 0x20000")
    srd(a, 12, 4, WS_SIZE)
    a(f"s_lshl_b32 s16, s7, 3\ns_mul_i32 s17, s3, {NT}\ns_add_u32 s16, s16, s17")
    a(f"s_lshl_b32 s17, s6, 16\ns_lshl_b32 s18, s16, 10\ns_add_u32 s17, s17, s18\ns_add_u32 s17, s17, {WS_Q}")
    per = 16 // NW
    def dma(c):
        for r in range(per):
            p = r * NW
            off = c * 8192 + (p % 8) * 1024 + (65536 if p >= 8 else 0)
            a(f"s_add_u32 m0, s18, {off}\ns_nop 0\nbuffer_load_dwordx4 v{vLANE16}, s[8:11], m0 offen lds")
    a(f"s_lshl_b32 s18, s3, 10")
    dma(0)
    for i in range(NT):
        a(f"buffer_load_dwordx4 {vr(Q[i],4)}, v{vLANE16}, s[12:15], s17 offen offset:{1024*i}")
    a(f"v_and_b32 v{vT0}, 31, v0\nv_lshlrev_b32 v{vT0}, 2, v{vT0}\ns_lshl_b32 s19, s16, 7\ns_add_u32 s19, s19, {WS_G}")
    for i in range(NT):
        a(f"buffer_load_dword v{G+i}, v{vT0}, s[12:15], s19 offen offset:{128*i}")
    for c in range(1, 8):
        dma(c)
    nload = 8 * per
    a(f"""v_and_b32 v{vT0}, 15, v0
    v_cmp_eq_u32 vcc, 0, v{vT0}
    v_mov_b32 v{vT1}, 0x3f803f80
    s_lshl_b32 s19, s3, 10
    v_cndmask_b32 v{S[0][0]}, 0, v{vT1}, vcc
    v_cndmask_b32 v{S[0][0]+1}, 0, v{vT1}, vcc
    v_cndmask_b32 v{S[0][0]+2}, 0, v{vT1}, vcc
    v_cndmask_b32 v{S[0][0]+3}, 0, v{vT1}, vcc
    s_and_b32 s19, s19, 0xfff
    s_add_u32 s19, s19, 0x20000
    v_add_u32 v{vT0}, s19, v{vLANE16}
    ds_write_b128 v{vT0}, {vr(S[0][0],4)}""")
    a(f"v_mov_b32 v{vKA}, v{vLANE16}")
    a(f"v_and_b32 v{vT0}, 15, v0\nv_lshlrev_b32 v{vT0}, 4, v{vT0}\nv_lshrrev_b32 v{vT1}, 5, v0\nv_lshl_add_u32 v{vT0}, v{vT1}, 8, v{vT0}")
    a(f"v_and_b32 v{vT1}, 16, v0\nv_cmp_eq_u32 vcc, 0, v{vT1}\nv_mov_b32 v{vVI}, 0x1000\nv_mov_b32 v{vVA}, 0x20000\nv_mov_b32 v{vT1}, 0x10000")
    a(f"v_cndmask_b32 v{vVI}, 0, v{vVI}, vcc\nv_cndmask_b32 v{vVA}, v{vVA}, v{vT1}, vcc\nv_add_u32 v{vVA}, v{vVA}, v{vT0}")
    a(f"v_mov_b32 v{vIDX}, 0xdddd")
    a(f"s_mov_b32 s20, 1\ns_mov_b32 s21, 3\ns_mov_b32 s23, 0")
    a(f"s_waitcnt vmcnt({nload - per}) lgkmcnt(0)\ns_barrier")
    a(f"ds_read_b128 {vr(K,4)}, v{vKA}\ns_waitcnt lgkmcnt(0)")
    for i in range(NT):
        a(f"v_mfma_f32_32x32x16_bf16 {vr(S[i][0],16)}, {vr(K,4)}, {vr(Q[i],4)}, 0")
    a("s_nop 7\ns_nop 3")
    def neg_bcast(i):
        a(f"v_mov_b32 v{vT1}, v{vT0}\ns_nop 1\nv_permlane32_swap_b32 v{vT0}, v{vT1}\ns_nop 1\nv_max_f32 v{vT0}, v{vT0}, v{vT1}")
        for j in range(16):
            a(f"v_sub_f32 v{C[i]+j}, 0, v{vT0}")
    for i in range(NT):
        s = S[i][0]
        a(f"v_max3_f32 v{vT0}, v{s}, v{s+1}, v{s+2}")
        for j in range(3, 15, 2):
            a(f"v_max3_f32 v{vT0}, v{vT0}, v{s+j}, v{s+j+1}")
        a(f"v_max_f32 v{vT0}, v{vT0}, v{s+15}")
        neg_bcast(i)
    a(f"{pfx}_pass:")
    for i in range(NT):
        for j in range(16):
            a(f"v_mov_b32 v{O[i]+j}, 0")
        for j in range(8, 16):
            a(f"v_mov_b32 v{S[i][1]+j}, 0")
    for j in range(4):
        a(f"v_mov_b32 v{V1+j}, 0")
    a(f"ds_read_b128 {vr(K,4)}, v{vKA}\nds_read_b128 {vr(V0,4)}, v{vVA}\ns_waitcnt lgkmcnt(1)")
    for i in range(NT):
        a(f"v_mfma_f32_32x32x16_bf16 {vr(S[i][0],16)}, {vr(K,4)}, {vr(Q[i],4)}, {vr(C[i],16)}")
    a(f"ds_read_b128 {vr(K,4)}, v{vKA} offset:1024")
    a("s_mov_b32 s22, 0\ns_waitcnt lgkmcnt(0)\ns_nop 7\ns_nop 1")
    a.raw(".p2align 6")
    a(f"{pfx}_loop:")
    a(f"s_cmp_eq_u32 s22, s20\ns_cbranch_scc1 {pfx}_bar1\ns_cmp_eq_u32 s22, s21\ns_cbranch_scc1 {pfx}_bar2\n{pfx}_go:")
    for u in range(4):
        cur = u & 1; nx = cur ^ 1
        def ex(i, lo, hi):
            for j in range(lo, hi):
                a(f"v_exp_f32 v{S[i][cur]+j}, v{S[i][cur]+j}")
        def pv(i, v, s):
            a(f"v_smfmac_f32_32x32x32_bf16 {vr(O[i],16)}, {vr(v,4)}, {vr(s,8)}, v{vIDX}")
        def qk(i):
            a(f"v_mfma_f32_32x32x16_bf16 {vr(S[i][nx],16)}, {vr(K,4)}, {vr(Q[i],4)}, {vr(C[i],16)}")
        rdV1 = f"ds_read_b128 {vr(V1,4)}, v{vVA} offset:{u*1024+512}"
        rdK = f"ds_read_b128 {vr(K,4)}, v{vKA} offset:{(u+2)*1024}"
        rdV0 = f"ds_read_b128 {vr(V0,4)}, v{vVA} offset:{(u+1)*1024}" if u < 3 else f"v_add_u32 v{vVA}, v{vVA}, v{vVI}\nds_read_b128 {vr(V0,4)}, v{vVA}"
        W = "s_waitcnt lgkmcnt(2)"
        if NT == 1:
            ex(0, 0, 3); a(W); pv(0, V1, S[0][nx] + 8); a(rdV1)
            ex(0, 3, 6); a(W); qk(0); a(rdK)
            ex(0, 6, 11); a(W); pv(0, V0, S[0][cur]); a(rdV0)
            ex(0, 11, 16)
        else:
            ex(0, 0, 4); a(W); pv(0, V1, S[0][nx] + 8)
            ex(0, 4, 8); pv(1, V1, S[1][nx] + 8); a(rdV1)
            ex(1, 0, 5); a(W); qk(0)
            ex(1, 5, 10); qk(1); a(rdK)
            ex(0, 8, 13); a(W); pv(0, V0, S[0][cur])
            ex(0, 13, 16); ex(1, 10, 12); pv(1, V0, S[1][cur]); a(rdV0)
            ex(1, 12, 16)
    a(f"v_add_u32 v{vKA}, 0x1000, v{vKA}")
    a(f"s_add_u32 s22, s22, 1\ns_cmp_lt_u32 s22, 16\ns_cbranch_scc1 {pfx}_loop")
    a("s_waitcnt lgkmcnt(0)\ns_nop 0")
    for i in range(NT):
        a(f"v_smfmac_f32_32x32x32_bf16 {vr(O[i],16)}, {vr(V1,4)}, {vr(S[i][1]+8,8)}, v{vIDX}")
    a("s_nop 7\ns_nop 3")
    for i in range(NT):
        a(f"v_mov_b32 v{O[i]+9}, v{O[i]+8}\ns_nop 1\nv_permlane32_swap_b32 v{O[i]+8}, v{O[i]+9}")
    a(f"s_cmp_lg_u32 s23, 0\ns_cbranch_scc1 {pfx}_fin")
    a(f"s_mov_b32 s24, 0x5f800000\nv_cmp_gt_f32 vcc, s24, v{O[0]+8}")
    if NT == 2:
        a(f"v_cmp_gt_f32 s[26:27], s24, v{O[1]+8}\ns_nop 3\ns_and_b64 vcc, vcc, s[26:27]")
    a(f"s_nop 3\ns_cmp_eq_u64 vcc, -1\ns_cbranch_scc0 {pfx}_slow")
    a(f"{pfx}_fin:")
    a(f"s_lshl_b32 s17, s16, 15\ns_lshl_b32 s18, s6, 10\ns_add_u32 s17, s17, s18\ns_add_u32 s17, s17, {WS_O}")
    for i in range(NT):
        a(f"v_rcp_f32 v{vT0}, v{O[i]+8}\ns_nop 0\nv_mul_f32 v{vT0}, v{vT0}, v{G+i}")
        for j in range(8):
            a(f"v_mul_f32 v{O[i]+j}, v{O[i]+j}, v{vT0}")
        for j in range(4):
            a(f"v_cvt_pk_bf16_f32 v{K+j}, v{O[i]+2*j}, v{O[i]+2*j+1}")
        a(f"buffer_store_dwordx4 {vr(K,4)}, v{vLANE16}, s[12:15], s17 offen")
        if i + 1 < NT:
            a("s_add_u32 s17, s17, 0x8000\ns_nop 1")
    a(f"s_branch {pfx}_end")
    a(f"{pfx}_bar1:\ns_waitcnt vmcnt({nload - 4*per})\ns_barrier\ns_branch {pfx}_go")
    a(f"{pfx}_bar2:\ns_waitcnt vmcnt(0)\ns_barrier\ns_branch {pfx}_go")
    a(f"{pfx}_slow:")
    a(f"s_mov_b32 s23, 1\ns_mov_b32 s20, -1\ns_mov_b32 s21, -1\ns_mov_b32 s22, 0\nv_mov_b32 v{vKA}, v{vLANE16}")
    for i in range(NT):
        a(f"v_mov_b32 v{C[i]}, 0xff800000")
    a(f"{pfx}_maxloop:")
    a(f"ds_read_b128 {vr(K,4)}, v{vKA}\ns_waitcnt lgkmcnt(0)")
    for i in range(NT):
        a(f"v_mfma_f32_32x32x16_bf16 {vr(S[i][0],16)}, {vr(K,4)}, {vr(Q[i],4)}, 0")
    a("s_nop 7\ns_nop 3")
    for i in range(NT):
        s = S[i][0]
        for j in range(0, 16, 2):
            a(f"v_max3_f32 v{C[i]}, v{C[i]}, v{s+j}, v{s+j+1}")
    a(f"v_add_u32 v{vKA}, 0x400, v{vKA}\ns_add_u32 s22, s22, 1\ns_cmp_lt_u32 s22, 64\ns_cbranch_scc1 {pfx}_maxloop")
    for i in range(NT):
        a(f"v_mov_b32 v{vT0}, v{C[i]}")
        neg_bcast(i)
    a(f"v_mov_b32 v{vKA}, v{vLANE16}\nv_lshlrev_b32 v{vT0}, 4, v{vVI}\nv_sub_u32 v{vVA}, v{vVA}, v{vT0}")
    a(f"s_branch {pfx}_pass")
    a(f"{pfx}_end:")
    return nv

def k2(a):
    name = "attn_kernel"
    kernel_head(a, name)
    a("s_cmp_ge_u32 s2, 256\ns_cbranch_scc1 at_end")
    nv = attn_body(a, 1, 8)
    a("s_endpgm")
    return name, nv

HEADER = open("gated_mix__mha_block__mixer_channel_mlp__prompt.s.ref").read().split("; Override")[0]

def build(launches=None):
    a = A()
    kernels = {"k1": (k1, "grid=(256,1,1) block=(512,1,1) lds=%d" % K1_LDS),
               "k2": (k2, "grid=(256,1,1) block=(512,1,1) lds=%d" % ATT_LDS),
               "m1": (kmlp1, "grid=(224,1,1) block=(256,1,1) lds=32768"),
               "k3": (k3, "grid=(256,1,1) block=(256,1,1) lds=49152")}
    order = launches or ["k1", "k2", "m1", "k3"]
    descs = []; names = {}
    for k in dict.fromkeys(order):
        names[k], nv = kernels[k][0](a)
        descs.append(descriptor(names[k], nv))
    head = HEADER + "".join(f"; @launch kernel={names[k]} {kernels[k][1]}\n" for k in order)
    head += '.amdgcn_target "amdgcn-amd-amdhsa--gfx950"\n.text\n'
    return head + a.text() + '.section .rodata,"a"\n.p2align 6\n' + "".join(".p2align 6\n" + d for d in descs)

if __name__ == "__main__":
    out = sys.argv[1] if len(sys.argv) > 1 else "gated_mix__mha_block__mixer_channel_mlp__prompt.s"
    open(out, "w").write(build())
    print("wrote", out)
```
